```python
import torch

def _softmax(x, axis=-1):
    return torch.softmax(x, dim=axis)

def _gelu(x):
    return torch.nn.functional.gelu(x, approximate='tanh')

def _silu(x):
    return torch.nn.functional.silu(x)

def _sigmoid(x):
    return torch.sigmoid(x)

def _layernorm(x, axis=-1, eps=1e-05):
    m = x.mean(dim=axis, keepdim=True)
    v = x.var(dim=axis, keepdim=True, unbiased=False)
    return (x - m) / torch.sqrt(v + eps)

def _scatter_add(tgt, idx, src, axis=0):
    return tgt.clone().index_add_(axis, idx, src)

def _segment_sum(src, seg, n):
    out = torch.zeros((n,) + src.shape[1:], dtype=src.dtype)
    return out.index_add_(0, seg, src)

def _pad(x, pw):
    flat = tuple((v for pair in reversed(pw) for v in pair))
    return torch.nn.functional.pad(x, flat)
kernel_name = 'adaLN_cond__mha_block_cached__glu_gated_reglu__prompt'

def setup_inputs():

    _w = lambda a: (lambda t: t.to(torch.bfloat16) if t.is_floating_point() else t)(torch.as_tensor(a))

    def _A_setup():
        B, Sq, D = (1, 2048, 576)
        H, Sk, Dh = (32, 2048, 128)
        return {'x': _w((lambda *s: torch.randn(*s, dtype=torch.bfloat16) * 0.05)(B, Sq, D)), 'k_cache': _w((lambda *s: torch.randn(*s, dtype=torch.bfloat16) * 1.6)(B, H, Sk, Dh)), 'v_cache': _w((lambda *s: torch.randn(*s, dtype=torch.bfloat16) * 0.8)(B, H, Sk, Dh)), 'wq': _w((lambda *s: torch.randn(*s, dtype=torch.bfloat16) * 1.6)(D, H * Dh) * D ** (-0.5)), 'wo': _w((lambda *s: torch.randn(*s, dtype=torch.bfloat16) * 0.8)(H * Dh, D) * (H * Dh) ** (-0.5))}
    _A_in = _A_setup()

    def _B_setup():
        B, S, D, F = (1, 2048, 576, 4608)
        return {'x': _w((lambda *s: torch.randn(*s, dtype=torch.bfloat16) * 0.05)(B, S, D)), 'W_gate': _w((lambda *s: torch.randn(*s, dtype=torch.bfloat16) * 0.4)(D, F) * (2.0 / D) ** 0.5), 'W_up': _w((lambda *s: torch.randn(*s, dtype=torch.bfloat16) * 0.4)(D, F) * (2.0 / D) ** 0.5), 'W_down': _w((lambda *s: torch.randn(*s, dtype=torch.bfloat16) * 0.4)(F, D) * (1.0 / F) ** 0.5)}
    _B_in = _B_setup()
    return {'A_x': _A_in['x'], 'A_k_cache': _A_in['k_cache'], 'A_v_cache': _A_in['v_cache'], 'A_wq': _A_in['wq'], 'A_wo': _A_in['wo'], 'B_x': _B_in['x'], 'B_W_gate': _B_in['W_gate'], 'B_W_up': _B_in['W_up'], 'B_W_down': _B_in['W_down'], 'c': _w((lambda *s: torch.randn(*s, dtype=torch.bfloat16) * 0.1)(1, 576) * 8.0), 'w_mod': _w((lambda *s: torch.randn(*s, dtype=torch.bfloat16) * 0.1)(576, 6 * 576) * 576 ** (-0.5) * 8.0)}

def reference(A_x, A_k_cache, A_v_cache, A_wq, A_wo, B_x, B_W_gate, B_W_up, B_W_down, c, w_mod):

    def _A_ref(x, k_cache, v_cache, wq, wo):
        B, Sq, D = x.shape
        H, Dh = (32, 128)
        q = (lambda x, *d: x.permute(*d))((x @ wq).reshape(B, Sq, H, Dh), 0, 2, 1, 3)
        scores = torch.einsum('bhqd,bhkd->bhqk', q, k_cache) * Dh ** (-0.5)
        p = _softmax(scores, axis=-1)
        o = torch.einsum('bhqk,bhkd->bhqd', p, v_cache)
        return (lambda x, *d: x.permute(*d))(o, 0, 2, 1, 3).reshape(B, Sq, H * Dh) @ wo

    def _B_ref(x, W_gate, W_up, W_down):
        gate = torch.einsum('bsd,df->bsf', x, W_gate)
        up = torch.einsum('bsd,df->bsf', x, W_up)
        gate = gate * (lambda x, dt: x.to(dt))(gate > 0, gate.dtype)
        h = gate * up
        return torch.einsum('bsf,fd->bsd', h, W_down)
    x = A_x
    mod = (_silu(c) @ w_mod).reshape(c.shape[0], 6, 1, -1)
    sa, ca, ga, sb, cb, gb = (mod[:, 0].clone(), mod[:, 1].clone(), mod[:, 2].clone(), mod[:, 3].clone(), mod[:, 4].clone(), mod[:, 5].clone())
    h = _layernorm(x, axis=-1) * (1 + ca) + sa
    x = x + ga * _A_ref(h, A_k_cache, A_v_cache, A_wq, A_wo)
    h = _layernorm(x, axis=-1) * (1 + cb) + sb
    x = x + gb * _B_ref(h, B_W_gate, B_W_up, B_W_down)
    return x
```

```python
import re

_REG = re.compile(r'\b([va])(\d+)\b|\b([va])\[(\d+):(\d+)\]')

def regs_of(op):
    out = []
    for m in _REG.finditer(op):
        if m.group(1): out.append((m.group(1), int(m.group(2))))
        else: out += [(m.group(3), i) for i in range(int(m.group(4)), int(m.group(5)) + 1)]
    return out

def R(kind, base, n=1):
    return f"{kind}{base}" if n == 1 else f"{kind}[{base}:{base+n-1}]"
def V(b, n=1): return R('v', b, n)
def A(b, n=1): return R('a', b, n)
def S(b, n=1): return R('s', b, n)

TRANS = ('v_exp_f32', 'v_log_f32', 'v_rcp_f32', 'v_rsq_f32', 'v_sqrt_f32', 'v_sin_f32', 'v_cos_f32')
N_D2OTHER = {2: 5, 4: 8, 8: 12, 16: 20}
N_D2C_OVL = {2: 4, 4: 6, 8: 10, 16: 18}
N_CWAR = {2: 1, 4: 3, 8: 7, 16: 15}

def mfma_passes(op):
    if '32x32x16' in op: return 8
    if '16x16x32' in op: return 4
    raise ValueError(op)

class Emitter:
    def __init__(self):
        self.lines = []
        self.t = 0
        self.valu_w = {}
        self.trans_w = {}
        self.mfma_w = {}
        self.mfma_c = {}
        self.store_r = {}
        self.m0_w = -100
        self.lq = []
        self.nmfma = 0
    def raw(self, s): self.lines.append(s)
    def comment(self, s): self.lines.append('    ; ' + s)
    def label(self, l): self.lines.append(l + ':')
    def _put(self, text, n=1):
        self.lines.append('    ' + text); self.t += n
    def nop(self, n):
        while n > 0:
            k = min(n, 16); self._put(f's_nop {k-1}', k); n -= k
    def state_key(self):
        t = self.t
        f = lambda d, lim: tuple(sorted((k, t - (v[0] if isinstance(v, tuple) else v)) for k, v in d.items()
                                   if t - (v[0] if isinstance(v, tuple) else v) <= lim))
        return (f(self.valu_w, 3), f(self.trans_w, 2), f(self.mfma_w, 21), f(self.mfma_c, 16), f(self.store_r, 3),
                tuple(tuple(sorted(x)) for x in self.lq))
    def _need_lgkm(self, regs):
        rs = set(regs); last = -1
        for i, d in enumerate(self.lq):
            if d & rs: last = i
        if last >= 0:
            n = len(self.lq) - last - 1
            self._put(f's_waitcnt lgkmcnt({min(n, 15)})')
            n = min(n, 15)
            self.lq = self.lq[len(self.lq) - n:] if n else []
    def wait_lgkm(self, n=0):
        if len(self.lq) > n:
            self._put(f's_waitcnt lgkmcnt({n})'); self.lq = self.lq[len(self.lq) - n:] if n else []
    def lgkm_clear(self): self.lq = []
    def I(self, text):
        text = text.strip()
        op = text.split()[0]
        rest = text[len(op):]
        ops = [o.strip() for o in rest.split(',')]
        is_mfma = op.startswith('v_mfma')
        is_valu = op.startswith('v_') and not is_mfma
        is_ds = op.startswith('ds_')
        is_vm = op.startswith('buffer_') or op.startswith('global_')
        W, Rd = [], []
        if is_mfma:
            W = regs_of(ops[0]); Rd = regs_of(ops[1]) + regs_of(ops[2]) + regs_of(ops[3])
        elif is_valu:
            if op.startswith('v_cmp') or op.startswith('v_readfirstlane') or op.startswith('v_readlane'):
                Rd = sum((regs_of(o) for o in ops[1:]), [])
            elif op.startswith('v_permlane'):
                W = regs_of(ops[0]) + regs_of(ops[1]); Rd = list(W)
            else:
                W = regs_of(ops[0]); Rd = sum((regs_of(o) for o in ops[1:]), [])
                if op.startswith('v_fmac') : Rd += W
        elif is_ds:
            if op.startswith('ds_read') or op.startswith('ds_bpermute') or op.startswith('ds_swizzle'):
                W = regs_of(ops[0]); Rd = sum((regs_of(o.split(' offset')[0]) for o in ops[1:]), [])
            else:
                Rd = sum((regs_of(o) for o in ops), [])
        elif is_vm:
            if 'store' in op or ' lds' in text or 'atomic' in op:
                Rd = sum((regs_of(o) for o in ops), [])
            else:
                W = regs_of(ops[0]); Rd = sum((regs_of(o) for o in ops[1:]), [])
        self._need_lgkm(Rd + W)
        need = self.t
        def req(t0, n):
            nonlocal need
            need = max(need, t0 + n + 1)
        if is_mfma:
            p = mfma_passes(op)
            ab = regs_of(ops[1]) + regs_of(ops[2]); c = regs_of(ops[3]); d = tuple(W)
            for r in ab + c:
                if r in self.valu_w: req(self.valu_w[r], 2)
            for r in ab:
                if r in self.mfma_w: req(self.mfma_w[r][0], N_D2OTHER[self.mfma_w[r][1]])
            for r in c:
                if r in self.mfma_w:
                    t0, pp, dd = self.mfma_w[r]
                    if not (dd == tuple(c) and pp == p): req(t0, N_D2C_OVL[pp])
            for r in W:
                if r in self.mfma_w:
                    t0, pp, dd = self.mfma_w[r]
                    if not (dd == d and tuple(c) == d): req(t0, N_D2C_OVL[pp])
        else:
            for r in Rd + W:
                if r in self.mfma_w: req(self.mfma_w[r][0], N_D2OTHER[self.mfma_w[r][1]])
            if is_valu:
                for r in W:
                    if r in self.mfma_c: req(self.mfma_c[r][0], N_CWAR[self.mfma_c[r][1]])
                    if r in self.store_r: req(self.store_r[r], 2)
                if op not in TRANS and not any(op.startswith(x) for x in TRANS):
                    for r in Rd:
                        if r in self.trans_w: req(self.trans_w[r], 1)
                if op.startswith('v_permlane') or 'dpp' in op or 'row_' in text or 'quad_perm' in text:
                    for r in Rd:
                        if r in self.valu_w: req(self.valu_w[r], 2)
                if op.startswith('v_readfirstlane') or op.startswith('v_readlane'):
                    for r in Rd:
                        if r in self.valu_w: req(self.valu_w[r], 1)
            elif W:
                for r in W:
                    if r in self.store_r: req(self.store_r[r], 1)
            if is_vm and ' lds' in text: req(self.m0_w, 1)
        if need > self.t: self.nop(need - self.t)
        t = self.t
        self._put(text)
        if is_mfma:
            self.nmfma += 1
            for r in W: self.mfma_w[r] = (t, p, d); self.valu_w.pop(r, None)
            for r in regs_of(ops[3]): self.mfma_c[r] = (t, p)
        elif is_valu:
            for r in W:
                self.valu_w[r] = t; self.mfma_w.pop(r, None)
                if any(op.startswith(x) for x in TRANS): self.trans_w[r] = t
                else: self.trans_w.pop(r, None)
        elif is_ds:
            self.lq.append(set(W))
            for r in W: self.valu_w.pop(r, None); self.mfma_w.pop(r, None)
        elif is_vm:
            if ('store' in op) and ('x4' in op or 'x3' in op):
                for r in regs_of(ops[0] if op.startswith('buffer') else ops[1]): self.store_r[r] = t
            for r in W: self.valu_w.pop(r, None); self.mfma_w.pop(r, None)
        elif op.startswith('s_') and ops and ops[0] == 'm0':
            self.m0_w = t
        if op == 's_nop':
            self.t += int(ops[0], 0)
    def many(self, txt):
        for l in txt.strip().split('\n'):
            l = l.split(';')[0].strip()
            if not l: continue
            if l.endswith(':'): self.label(l[:-1])
            else: self.I(l)
    def text(self): return '\n'.join(self.lines) + '\n'

def kernel_desc(name, vgpr, agpr_off, total, sgpr=96):
    return f""".p2align 6
.amdhsa_kernel {name}
  .amdhsa_next_free_vgpr {total}
  .amdhsa_next_free_sgpr {sgpr}
  .amdhsa_accum_offset {agpr_off}
  .amdhsa_group_segment_fixed_size 0
  .amdhsa_kernarg_size 112
  .amdhsa_user_sgpr_count 2
  .amdhsa_user_sgpr_kernarg_segment_ptr 1
  .amdhsa_system_sgpr_workgroup_id_x 1
  .amdhsa_float_denorm_mode_32 3
.end_amdhsa_kernel
"""
def kernel_head(name):
    return f".globl {name}\n.p2align 8\n.type {name},@function\n{name}:\n"
```

```python
from asmlib import *
from small import *

def gen_attn(name):
    e = Emitter()
    e.raw(kernel_head(name))
    O = lambda qb, db: A(64 * qb + 16 * db, 16)
    Q = lambda qb, t: A(128 + 32 * qb + 4 * t, 4)
    KF = lambda t: A(192 + 4 * t, 4)
    VF = lambda tp, db: A(224 + 16 * tp + 4 * db, 4)
    VFh = lambda tp, db, h: A(224 + 16 * tp + 4 * db + 2 * h, 2)
    Sb = lambda qb: 16 + 16 * qb
    NM = lambda qb: 48 + 16 * qb
    Pb = lambda qb: 80 + 8 * qb
    ET = 96
    vKa = [112 + t for t in range(8)]
    vVa = [120 + d for d in range(4)]
    vKo = [124 + j for j in range(4)]
    vVo = 128
    vL = lambda qb: 129 + qb
    vBS = lambda qb: 131 + qb
    vFL = lambda qb: 133 + qb
    TM = 136
    KST = 16384; VBASE = 65536
    sTHR = lambda qb: 50 + qb
    T = 140; L = T + 1
    e.many(f"""
    s_cmp_ge_u32 s2, 256
    s_cbranch_scc1 {name}_end
    s_load_dwordx2 s[4:5], s[0:1], {KA['k']}
    s_load_dwordx2 s[6:7], s[0:1], {KA['v']}
    s_load_dwordx2 s[10:11], s[0:1], {KA['ws']}
    v_lshrrev_b32 v{T}, 6, v0
    v_and_b32 v{L}, 63, v0
    v_readfirstlane_b32 s36, v{T}
    s_and_b32 s37, s2, 7
    s_lshl_b32 s37, s37, 2
    s_lshr_b32 s38, s2, 3
    s_and_b32 s38, s38, 3
    s_add_u32 s37, s37, s38
    s_lshr_b32 s38, s2, 5
    """)
    e.many(f"""
    v_lshrrev_b32 v{T+2}, 4, v{L}
    v_and_b32 v{T+3}, 15, v{L}
    v_lshlrev_b32 v{T+4}, 8, v{T+2}
    s_lshl_b32 s44, s36, 12
    v_add_u32 v{T+4}, s44, v{T+4}
    """)
    for jj in range(4):
        e.I(f'v_add_u32 v{T+5}, {4*jj}, v{T+2}')
        e.I(f'v_xor_b32 v{T+5}, v{T+5}, v{T+3}')
        e.I(f'v_lshl_add_u32 v{vKo[jj]}, v{T+5}, 4, v{T+4}')
    e.many(f"""
    v_lshlrev_b32 v{T+5}, 2, v{T+2}
    v_xor_b32 v{T+5}, v{T+5}, v{T+3}
    v_lshl_add_u32 v{vVo}, v{T+5}, 4, v{T+4}
    """)
    e.many(f"""
    v_and_b32 v{T+2}, 31, v{L}
    v_lshrrev_b32 v{T+4}, 5, v{L}
    v_lshlrev_b32 v{T+5}, 8, v{T+2}
    """)
    for t in range(8):
        e.I(f'v_add_u32 v{T+6}, {2*t}, v{T+4}')
        e.I(f'v_xor_b32 v{T+6}, v{T+6}, v{T+3}')
        e.I(f'v_lshl_add_u32 v{vKa[t]}, v{T+6}, 4, v{T+5}')
    e.many(f"""
    v_lshrrev_b32 v{T+5}, 2, v{T+3}
    v_lshl_add_u32 v{T+6}, v{T+4}, 2, v{T+5}
    v_lshlrev_b32 v{T+6}, 8, v{T+6}
    v_lshrrev_b32 v{T+7}, 4, v{L}
    v_and_b32 v{T+7}, 1, v{T+7}
    v_lshl_add_u32 v{T+6}, v{T+7}, 5, v{T+6}
    v_and_b32 v{T+7}, 3, v{L}
    v_lshl_add_u32 v{T+6}, v{T+7}, 3, v{T+6}
    v_add_u32 v{T+6}, {VBASE}, v{T+6}
    """)
    for db in range(4):
        e.I(f'v_xor_b32 v{T+7}, {db}, v{T+5}')
        e.I(f'v_lshl_add_u32 v{vVa[db]}, v{T+7}, 6, v{T+6}')
    vQO = [152, 153]
    e.many(f"""
    s_lshl_b32 s40, s38, 8
    s_lshl_b32 s41, s36, 6
    s_add_u32 s40, s40, s41
    v_add_u32 v{T+2}, s40, v{T+2}
    v_lshlrev_b32 v{T+2}, 13, v{T+2}
    v_lshl_add_u32 v{T+2}, v{T+4}, 4, v{T+2}
    s_lshl_b32 s40, s37, 8
    v_add_u32 v{vQO[0]}, s40, v{T+2}
    v_add_u32 v{vQO[1]}, {32*8192}, v{vQO[0]}
    s_waitcnt lgkmcnt(0)
    s_lshl_b32 s40, s37, 19
    """)
    srd(e, 12, 4, 's40', 524288)
    srd(e, 16, 6, 's40', 524288)
    srd(e, 20, 10, WS_Q, SZ_Q)
    srd(e, 24, 10, WS_O, SZ_Q)
    e.I('s_mov_b32 s46, 0')
    e.I('s_mov_b32 s47, 0')
    e.I(f's_add_u32 s45, s44, {VBASE}')
    def dmaK(st):
        o = [f's_add_u32 m0, s44, {st*KST}']
        o += [f'buffer_load_dwordx4 v{vKo[jj]}, s[12:15], s46 offen offset:{1024*jj} lds' for jj in range(4)]
        o.append('s_add_u32 s46, s46, 16384')
        return o
    def dmaV(st):
        o = [f's_add_u32 m0, s45, {st*KST}']
        o += [f'buffer_load_dwordx4 v{vVo}, s[16:19], s47 offen offset:{1024*jj} lds' for jj in range(4)]
        o.append('s_add_u32 s47, s47, 16384')
        return o
    for x in dmaK(0): e.I(x)
    for qb in range(2):
        for t in range(8):
            e.I(f'buffer_load_dwordx4 {Q(qb,t)}, v{vQO[qb]}, s[20:23], 0 offen offset:{32*t}')
    for x in dmaV(0) + dmaK(1) + dmaV(1) + dmaK(2): e.I(x)
    for r in range(128): e.I(f'v_accvgpr_write_b32 a{r}, 0')
    for r in range(224, 256): e.I(f'v_accvgpr_write_b32 a{r}, 0')
    for r in range(48, 96): e.I(f'v_mov_b32 v{r}, 0')
    for qb in range(2):
        e.I(f'v_mov_b32 v{vL(qb)}, 0'); e.I(f'v_mov_b32 v{vFL(qb)}, 0xff800000'); e.I(f's_mov_b32 s{sTHR(qb)}, 0xbf800000')
    e.I('s_waitcnt vmcnt(12)')
    e.I('s_barrier')
    def rdK(st, kb, t): return f'ds_read_b128 {KF(t)}, v{vKa[t]} offset:{st*KST + 8192*kb}'
    def rdV(st, kb, tp, db): return [f'ds_read_b64_tr_b16 {VFh(tp,db,h)}, v{vVa[db]} offset:{st*KST + (32*kb+16*tp+8*h)*256}' for h in range(2)]
    for t in range(8): e.I(rdK(0, 0, t))

    def valu_list(qb, n):
        s = Sb(qb); p = Pb(qb); bs = vBS(qb)
        o = []
        ex = lambda i: (8, f'v_exp_f32 v{ET + (i % 16)}, v{s+i}')
        seq = []
        seq.append(ex(0)); seq.append(ex(1)); seq.append(ex(2))
        seq.append((4, f'v_add_f32 v{bs}, v{ET}, v{ET+1}'))
        for i in range(3, 16):
            seq.append(ex(i))
            if i % 2 == 1: seq.append((4, f'v_cvt_pk_bf16_f32 v{p+(i-3)//2}, v{ET+i-3}, v{ET+i-2}'))
            seq.append((4, f'v_add_f32 v{bs}, v{bs}, v{ET+i-1}'))
        seq.append((4, f'v_cvt_pk_bf16_f32 v{p+7}, v{ET+14}, v{ET+15}'))
        seq.append((4, f'v_add_f32 v{bs}, v{bs}, v{ET+15}'))
        seq.append((4, f'v_cmp_nge_f32 vcc, s{sTHR(qb)}, v{bs}'))
        seq.append((8, f'@BR {n} {qb}'))
        seq.append((4, f'v_add_f32 v{vL(qb)}, v{vL(qb)}, v{bs}'))
        return seq
    stubs = []
    uid = [0]
    def emit_fill(x):
        if x.startswith('@BR'):
            _, n, qb = x.split(); uid[0] += 1; u = uid[0]
            e.I(f's_cbranch_vccnz {name}_stub{u}')
            e.label(f'{name}_back{u}')
            stubs.append((u, int(qb)))
        else:
            e.I(x)
    pend = []
    def pair(T4, b, last=False, tail=False):
        nonlocal pend
        st = T4 % 4; kb, qb = divmod(b, 2)
        pkb, pqb = divmod((b - 1) % 4, 2)
        slots = []
        if not tail:
            for t in range(8):
                c = V(NM(qb), 16) if t == 0 else V(Sb(qb), 16)
                m = f'v_mfma_f32_32x32x16_bf16 {V(Sb(qb),16)}, {KF(t)}, {Q(qb,t)}, {c}'
                man = []
                if qb == 1:
                    nst, nkb = (st, 1) if kb == 0 else ((st + 1) % 4, 0)
                    man.append(rdK(nst, nkb, t))
                slots.append((m, man))
        for tp in range(2):
            for db in range(4):
                m = f'v_mfma_f32_32x32x16_bf16 {O(pqb,db)}, {VF(tp,db)}, {V(Pb(pqb)+4*tp,4)}, {O(pqb,db)}'
                man = []
                if pqb == 1 and not tail:
                    man += rdV(st, kb, tp, db)
                slots.append((m, man))
        extra = []
        pre0 = []
        if b == 3 and not tail:
            pre0 = ['s_waitcnt vmcnt(12)', 's_barrier']
        if b == 0 and not tail:
            extra = dmaV((st + 2) % 4) + dmaK((st + 3) % 4)
        newv = valu_list(qb, b) if not tail else []
        for x in pre0: e.I(x)
        nq = 0 if tail else 8
        for j, (m, man) in enumerate(slots):
            if j == nq:
                for c_, x in pend: emit_fill(x)
                pend = []
            e.I(m)
            budget = 24
            for x in man: e.I(x); budget -= 4
            if j >= nq + 2 and newv:
                pend = newv; newv = []
            while pend and budget >= pend[0][0] - 2:
                c_, x = pend.pop(0); emit_fill(x); budget -= c_
            while extra and budget >= 4 and not pend:
                x = extra.pop(0); e.I(x); budget -= (12 if 'buffer' in x else 4)
        for x in extra: e.I(x)
    import copy, re
    for T4 in range(4):
        for b in range(4): pair(T4, b)
    e.I('s_mov_b32 s48, 0')
    e.label(f'{name}_loop')
    start = len(e.lines)
    for T4 in range(4):
        for b in range(4): pair(T4, b)
    e.I('s_add_u32 s48, s48, 1')
    e.I('s_cmp_lt_u32 s48, 7')
    e.I(f's_cbranch_scc1 {name}_loop')
    body1 = e.lines[start:]
    saved = (list(pend), list(stubs), uid[0]); e_real = e
    e = copy.deepcopy(e_real)
    start2 = len(e.lines)
    for T4 in range(4):
        for b in range(4): pair(T4, b)
    e.I('s_add_u32 s48, s48, 1')
    e.I('s_cmp_lt_u32 s48, 7')
    e.I(f's_cbranch_scc1 {name}_loop')
    body2 = e.lines[start2:]
    norm = lambda L_: [re.sub(r'(stub|back)\d+', r'\1', x) for x in L_]
    steady = norm(body1) == norm(body2)
    e = e_real; pend = saved[0]; stubs[:] = saved[1]; uid[0] = saved[2]
    if not steady:
        raise RuntimeError('attention loop body not steady')
    pair(0, 0, tail=True)
    for qb in range(2):
        l = vL(qb)
        e.I(f'v_mov_b32 v{TM}, v{l}'); e.I(f'v_mov_b32 v{TM+1}, v{l}')
        e.I(f'v_permlane32_swap_b32 v{TM}, v{TM+1}')
        e.I(f'v_add_f32 v{l}, v{TM}, v{TM+1}')
        e.I(f'v_rcp_f32 v{l}, v{l}')
    tog = 0
    for qb in range(2):
        for db in range(4):
            for gp in range(2):
                o = 16 + 4 * tog; tog = (tog + 1) % 4
                for h in range(4):
                    r = 64 * qb + 16 * db + 8 * gp + 2 * h
                    e.I(f'v_accvgpr_read_b32 v{TM}, a{r}'); e.I(f'v_accvgpr_read_b32 v{TM+1}, a{r+1}')
                    e.I(f'v_mul_f32 v{TM}, v{TM}, v{vL(qb)}'); e.I(f'v_mul_f32 v{TM+1}, v{TM+1}, v{vL(qb)}')
                    e.I(f'v_cvt_pk_bf16_f32 v{o+h}, v{TM}, v{TM+1}')
                e.I(f'v_permlane32_swap_b32 v{o}, v{o+2}'); e.I(f'v_permlane32_swap_b32 v{o+1}, v{o+3}')
                e.I(f'buffer_store_dwordx4 {V(o,4)}, v{vQO[qb]}, s[24:27], 0 offen offset:{64*db+32*gp}')
    e.label(f'{name}_end'); e.I('s_endpgm')
    for u, qb in stubs:
        e.label(f'{name}_stub{u}')
        e.raw(f'    s_call_b64 s[30:31], {name}_slow{qb}')
        e.raw(f'    s_branch {name}_back{u}')
    for qb in range(2):
        f = Emitter()
        s = Sb(qb); p = Pb(qb); bs = vBS(qb)
        f.label(f'{name}_slow{qb}')
        f.nop(20)
        f.I(f'v_max_f32 v{TM}, v{s}, v{s+1}')
        for i in range(2, 16, 2): f.I(f'v_max3_f32 v{TM}, v{TM}, v{s+i}, v{s+i+1}')
        f.I(f'v_mov_b32 v{TM+1}, v{TM}')
        f.I(f'v_permlane32_swap_b32 v{TM}, v{TM+1}')
        f.I(f'v_max_f32 v{TM}, v{TM}, v{TM+1}')
        f.I(f'v_max_f32 v{TM}, v{TM}, v{vFL(qb)}')
        f.I(f'v_max_f32 v{TM+1}, 0, v{TM}')
        f.I(f'v_exp_f32 v{TM+1}, -v{TM+1}')
        f.I(f'v_mov_b32 v{vFL(qb)}, 0')
        f.I(f's_mov_b32 s{sTHR(qb)}, 0x4f800000')
        for i in range(16): f.I(f'v_sub_f32 v{NM(qb)+i}, v{NM(qb)+i}, v{TM}')
        f.I(f'v_mul_f32 v{vL(qb)}, v{vL(qb)}, v{TM+1}')
        for r in range(64 * qb, 64 * qb + 64):
            f.I(f'v_accvgpr_read_b32 v{TM+2}, a{r}')
            f.I(f'v_mul_f32 v{TM+2}, v{TM+2}, v{TM+1}')
            f.I(f'v_accvgpr_write_b32 a{r}, v{TM+2}')
        for i in range(16):
            f.I(f'v_sub_f32 v{ET+i}, v{s+i}, v{TM}')
            f.I(f'v_exp_f32 v{ET+i}, v{ET+i}')
        f.I(f'v_add_f32 v{bs}, v{ET}, v{ET+1}')
        for i in range(2, 16): f.I(f'v_add_f32 v{bs}, v{bs}, v{ET+i}')
        for j in range(8): f.I(f'v_cvt_pk_bf16_f32 v{p+j}, v{ET+2*j}, v{ET+2*j+1}')
        f.nop(4)
        f.raw('    s_setpc_b64 s[30:31]')
        e.lines += f.lines
    return e.text(), kernel_desc(name, 256, 256, 512, 64), 131072
```

```python
from asmlib import *
from small import *
import struct
def f2u(x): return struct.unpack('<I', struct.pack('<f', x))[0]

def interleave(e, mf, fill, pre=None):
    n = len(mf); k = 0
    for j, m in enumerate(mf):
        e.I(m)
        if pre and j in pre:
            for x in pre[j]: e.I(x)
        tgt = (len(fill) * (j + 1) + n - 1) // n
        while k < tgt:
            e.I(fill[k]); k += 1

def gemm32(name, mode):
    e = Emitter()
    e.raw(kernel_head(name))
    q = mode == 'q'
    NCH = 9; LDX = 1152
    NB = 4 if q else 9
    RS = 3 if q else 2
    XST = 32768; WST = 16384 if q else 36992
    STAGE = XST + WST
    LDW = 8192 if q else 9216
    nW = 4 if q else 9
    NDMA = 8 + nW
    vXo = [1, 2]
    if q:
        vWo = [3]; vXa = [[4 + 4 * r + s for s in range(4)] for r in range(RS)]
        vWa = [[16 + 4 * r + n for n in range(4)] for r in range(RS)]
        acc = lambda mb, nb: V(64 + 16 * (nb * 2 + mb), 16)
        accr = lambda mb, nb, i: ('v', 64 + 16 * (nb * 2 + mb) + i)
        fX = lambda buf, mb: V(192 + 24 * buf + 4 * mb, 4)
        fWh = lambda buf, nb, h: V(192 + 24 * buf + 8 + 4 * nb + 2 * h, 2)
        fW = lambda buf, nb: V(192 + 24 * buf + 8 + 4 * nb, 4)
        TOT = (240, 240, 240)
    else:
        vWo = list(range(3, 12)); vXa = [[12 + 4 * r + s for s in range(4)] for r in range(RS)]
        vWa = [[20 + r] for r in range(RS)]
        def _acc(t): return ('v', 32 + 16 * t) if t < 14 else ('a', 16 * (t - 14))
        acc = lambda mb, nb: R(_acc(nb * 2 + mb)[0], _acc(nb * 2 + mb)[1], 16)
        accr = lambda mb, nb, i: (_acc(nb * 2 + mb)[0], _acc(nb * 2 + mb)[1] + i)
        fX = lambda buf, mb: A(64 + 44 * buf + 4 * mb, 4)
        fWh = lambda buf, nb, h: A(64 + 44 * buf + 8 + 4 * nb + 2 * h, 2)
        fW = lambda buf, nb: A(64 + 44 * buf + 8 + 4 * nb, 4)
        TOT = (256, 256, 256 + 152)
    T = 40
    e.many(f"""
    s_cmp_ge_u32 s2, 256
    s_cbranch_scc1 {name}_end
    s_load_dwordx2 s[6:7], s[0:1], {KA['wq'] if q else KA['wg']}
    s_load_dwordx2 s[8:9], s[0:1], {KA['wu']}
    s_load_dwordx2 s[10:11], s[0:1], {KA['ws']}
    v_lshrrev_b32 v{T}, 6, v0
    v_and_b32 v{T+1}, 63, v0
    v_readfirstlane_b32 s36, v{T}
    s_and_b32 s37, s2, 7
    s_lshl_b32 s37, s37, 2
    s_lshr_b32 s38, s2, 3
    s_and_b32 s38, s38, 3
    s_add_u32 s37, s37, s38
    s_lshr_b32 s38, s2, 5
    """)
    L = T + 1
    e.many(f"""
    v_lshrrev_b32 v{T+2}, 3, v{L}
    s_movk_i32 s39, {LDX}
    v_mul_lo_u32 v{T+2}, v{T+2}, s39
    s_mul_i32 s40, s36, {64*LDX}
    v_add_u32 v{T+2}, s40, v{T+2}
    v_and_b32 v{T+3}, 7, v{L}
    v_lshrrev_b32 v{T+4}, 4, v{L}
    v_xor_b32 v{T+5}, v{T+3}, v{T+4}
    v_lshl_add_u32 v{vXo[0]}, v{T+5}, 4, v{T+2}
    v_xor_b32 v{T+5}, 4, v{T+5}
    v_lshl_add_u32 v{vXo[1]}, v{T+5}, 4, v{T+2}
    """)
    for j in range(8): e.I(f's_mov_b32 s{24+j}, {8*j*LDX - 1024*(j%4)}')
    if q:
        e.many(f"""
        v_and_b32 v{T+3}, 15, v{L}
        v_lshlrev_b32 v{T+5}, 2, v{T+4}
        v_xor_b32 v{T+3}, v{T+3}, v{T+5}
        v_lshlrev_b32 v{T+3}, 4, v{T+3}
        v_lshl_add_u32 v{T+3}, v{T+4}, 13, v{T+3}
        s_lshl_b32 s40, s36, 17
        s_lshl_b32 s41, s37, 8
        s_add_u32 s40, s40, s41
        v_add_u32 v{vWo[0]}, s40, v{T+3}
        """)
        for jj in range(4): e.I(f's_mov_b32 s{32+jj}, {31744*jj}')
    else:
        e.many(f"""
        s_and_b32 s40, s36, 1
        s_mul_i32 s40, s40, 576
        s_mul_i32 s41, s37, 288
        s_mov_b32 s42, 58255
        s_movk_i32 s43, {LDW}
        """)
        for jj in range(9):
            e.many(f"""
            v_add_u32 v{T+3}, {64*jj}, v{L}
            v_add_u32 v{T+3}, s40, v{T+3}
            v_mul_lo_u32 v{T+5}, v{T+3}, s42
            v_lshrrev_b32 v{T+5}, 20, v{T+5}
            v_mul_u32_u24 v{T+6}, 18, v{T+5}
            v_sub_u32 v{T+6}, v{T+3}, v{T+6}
            v_mul_lo_u32 v{T+5}, v{T+5}, s43
            v_lshl_add_u32 v{T+5}, v{T+6}, 4, v{T+5}
            v_add_u32 v{T+5}, s41, v{T+5}
            v_subrev_u32 v{vWo[jj]}, {1024*(jj%4)}, v{T+5}
            """)
    e.many(f"""
    v_and_b32 v{T+3}, 31, v{L}
    v_lshrrev_b32 v{T+5}, 5, v{L}
    v_lshrrev_b32 v{T+6}, 1, v{T+3}
    v_and_b32 v{T+6}, 7, v{T+6}
    v_lshlrev_b32 v{T+7}, 7, v{T+3}
    s_lshl_b32 s40, s36, 13
    v_add_u32 v{T+7}, s40, v{T+7}
    """)
    for s in range(4):
        e.I(f'v_add_u32 v{T+8}, {2*s}, v{T+5}')
        e.I(f'v_xor_b32 v{T+8}, v{T+8}, v{T+6}')
        e.I(f'v_lshl_add_u32 v{T+8}, v{T+8}, 4, v{T+7}')
        for r in range(RS): e.I(f'v_add_u32 v{vXa[r][s]}, {r*STAGE}, v{T+8}')
    e.many(f"""
    v_and_b32 v{T+3}, 15, v{L}
    v_lshrrev_b32 v{T+3}, 2, v{T+3}
    v_and_b32 v{T+6}, 3, v{L}
    v_lshrrev_b32 v{T+7}, 4, v{L}
    v_and_b32 v{T+7}, 1, v{T+7}
    v_lshl_add_u32 v{T+8}, v{T+5}, 3, v{T+3}
    """)
    if q:
        e.many(f"""
        v_lshlrev_b32 v{T+8}, 8, v{T+8}
        v_lshl_add_u32 v{T+8}, v{T+7}, 5, v{T+8}
        v_lshl_add_u32 v{T+8}, v{T+6}, 3, v{T+8}
        """)
        for nb in range(4):
            e.I(f'v_xor_b32 v{T+9}, {nb}, v{T+3}')
            e.I(f'v_lshl_add_u32 v{T+9}, v{T+9}, 6, v{T+8}')
            for r in range(RS): e.I(f'v_add_u32 v{vWa[r][nb]}, {r*STAGE+XST}, v{T+9}')
    else:
        e.many(f"""
        v_mul_u32_u24 v{T+8}, 288, v{T+8}
        v_mul_u32_u24 v{T+9}, 18560, v{T+7}
        v_add_u32 v{T+8}, v{T+8}, v{T+9}
        v_lshl_add_u32 v{T+8}, v{T+6}, 3, v{T+8}
        """)
        for r in range(RS): e.I(f'v_add_u32 v{vWa[r][0]}, {r*STAGE+XST}, v{T+8}')
    e.I('s_waitcnt lgkmcnt(0)')
    e.I(f's_mul_i32 s40, s38, {256*LDX}')
    e.I(f's_add_u32 s40, s40, {hex(WS_H1 if q else WS_H2)}')
    srd(e, 12, 10, 's40', 256 * LDX)
    if not q:
        e.I('s_cmp_ge_u32 s36, 2')
        e.I('s_cselect_b32 s6, s8, s6'); e.I('s_cselect_b32 s7, s9, s7')
    srd(e, 16, 6, 0, 576 * LDW)
    srd(e, 20, 10, WS_Q if q else WS_G, SZ_Q if q else SZ_G)
    e.I('s_lshl_b32 s44, s36, 13')
    if q:
        e.I('s_lshl_b32 s45, s36, 12'); e.I(f's_add_u32 s45, s45, {XST}')
    else:
        e.many(f"""
        s_and_b32 s45, s36, 1
        s_mul_i32 s45, s45, 9216
        s_lshr_b32 s46, s36, 1
        s_mul_i32 s46, s46, 18560
        s_add_u32 s45, s45, s46
        s_add_u32 s45, s45, {XST}
        """)
    def dma(c):
        st = (c % RS) * STAGE
        o = []
        for j in range(8):
            if j % 4 == 0: o.append(f's_add_u32 m0, s44, {st + 4096*(j//4)}')
            o.append(f'buffer_load_dwordx4 v{vXo[j%2]}, s[12:15], s{24+j} offen offset:{1024*(j%4)} lds')
        for jj in range(nW):
            if jj % 4 == 0: o.append(f's_add_u32 m0, s45, {st + 4096*(jj//4)}')
            if q: o.append(f'buffer_load_dwordx4 v{vWo[0]}, s[16:19], s{32+jj} offen offset:{1024*jj} lds')
            else: o.append(f'buffer_load_dwordx4 v{vWo[jj]}, s[16:19], 0 offen offset:{1024*(jj%4)} lds')
        o.append('s_add_u32 s12, s12, 128'); o.append('s_addc_u32 s13, s13, 0'); o.append('s_sub_u32 s14, s14, 128')
        o.append(f's_add_u32 s16, s16, {64*LDW}'); o.append('s_addc_u32 s17, s17, 0'); o.append(f's_sub_u32 s18, s18, {64*LDW}')
        return o
    for c in range(RS):
        for x in dma(c): e.I(x)
    for nb in range(NB):
        for mb in range(2):
            for i in range(16):
                k, r = accr(mb, nb, i)
                e.I(f'v_mov_b32 v{r}, 0' if k == 'v' else f'v_accvgpr_write_b32 a{r}, 0')
    def reads(t):
        c, s = divmod(t, 4); r = c % RS; b = t % 2; o = []
        def rx(mb): o.append(f'ds_read_b128 {fX(b,mb)}, v{vXa[r][s]} offset:{4096*mb}')
        def rw(nb):
            for h in range(2):
                if q: o.append(f'ds_read_b64_tr_b16 {fWh(b,nb,h)}, v{vWa[r][nb]} offset:{(16*s+4*h)*256}')
                else: o.append(f'ds_read_b64_tr_b16 {fWh(b,nb,h)}, v{vWa[r][0]} offset:{(16*s+4*h)*288+32*nb}')
        rx(0); rw(0); rx(1)
        for nb in range(1, NB): rw(nb)
        return o
    def mfmas(t):
        b = t % 2
        return [f'v_mfma_f32_32x32x16_bf16 {acc(mb,nb)}, {fW(b,nb)}, {fX(b,mb)}, {acc(mb,nb)}' for nb in range(NB) for mb in range(2)]
    e.I(f's_waitcnt vmcnt({(RS-1)*NDMA})')
    e.I('s_barrier')
    for x in reads(0): e.I(x)
    NT = NCH * 4
    for t in range(NT):
        c, s = divmod(t, 4)
        mf = mfmas(t)
        if t == NT - 1:
            interleave(e, mf, [])
        elif s == 3:
            e.wait_lgkm(0)
            nout = min(RS - 2, NCH - 2 - c) * NDMA
            fill = reads(t + 1)
            if c + RS < NCH:
                d = dma(c + RS); rd = fill; fill = rd[:3]; rd = rd[3:]
                while rd or d:
                    if rd: fill.append(rd.pop(0))
                    if d: fill.append(d.pop(0))
            e.I(mf[0]); e.I(mf[1])
            e.I(f's_waitcnt vmcnt({nout})'); e.I('s_barrier')
            interleave(e, mf[2:], fill)
        else:
            interleave(e, mf, reads(t + 1))
    E = 8
    e.many(f"""
    v_and_b32 v1, 63, v0
    v_and_b32 v2, 31, v1
    v_lshrrev_b32 v3, 5, v1
    s_lshl_b32 s40, s38, 8
    s_lshl_b32 s41, s36, 6
    s_add_u32 s40, s40, s41
    v_add_u32 v2, s40, v2
    s_movk_i32 s41, {LDW}
    v_mul_lo_u32 v2, v2, s41
    v_lshl_add_u32 v2, v3, 4, v2
    s_mul_i32 s40, s37, {256 if q else 288}
    v_add_u32 v2, s40, v2
    v_add_u32 v3, {32*LDW}, v2
    """)
    if q: e.I(f's_mov_b32 s42, {hex(f2u(1.4426950408889634 / (128 ** 0.5)))}')
    tog = 0
    for nb in range(NB):
        for mb in range(2):
            def val(i, tmp):
                k, r = accr(mb, nb, i)
                if k == 'v': return r
                e.I(f'v_accvgpr_read_b32 v{tmp}, a{r}'); return tmp
            if q:
                for gp in range(2):
                    o = E + 4 * tog; tog ^= 1
                    for h in range(4):
                        i = 8 * gp + 2 * h
                        r0 = accr(mb, nb, i)[1]
                        e.I(f'v_mul_f32 v{r0}, s42, v{r0}'); e.I(f'v_mul_f32 v{r0+1}, s42, v{r0+1}')
                        e.I(f'v_cvt_pk_bf16_f32 v{o+h}, v{r0}, v{r0+1}')
                    e.I(f'v_permlane32_swap_b32 v{o}, v{o+2}'); e.I(f'v_permlane32_swap_b32 v{o+1}, v{o+3}')
                    e.I(f'buffer_store_dwordx4 {V(o,4)}, v{2+mb}, s[20:23], 0 offen offset:{64*nb+32*gp}')
            else:
                o = E + 4 * tog; tog ^= 1
                for h in range(4):
                    i = 2 * h
                    g0 = val(i, 16); g1 = val(i + 1, 17); u0 = val(i + 8, 18); u1 = val(i + 9, 19)
                    e.I(f'v_max_f32 v20, 0, v{g0}'); e.I(f'v_max_f32 v21, 0, v{g1}')
                    e.I(f'v_mul_f32 v20, v20, v{u0}'); e.I(f'v_mul_f32 v21, v21, v{u1}')
                    e.I(f'v_cvt_pk_bf16_f32 v{o+h}, v20, v21')
                e.I(f'v_permlane32_swap_b32 v{o}, v{o+2}'); e.I(f'v_permlane32_swap_b32 v{o+1}, v{o+3}')
                e.I(f'buffer_store_dwordx4 {V(o,4)}, v{2+mb}, s[20:23], 0 offen offset:{32*nb}')
    e.label(f'{name}_end'); e.I('s_endpgm')
    return e.text(), kernel_desc(name, TOT[0], TOT[1], TOT[2], 64), RS * STAGE

def gemm16(name, mode):
    e = Emitter()
    e.raw(kernel_head(name))
    K = 4096 if mode == 'o' else 4608
    LDX = 2 * K; KS = K // 4; NCH = KS // 64; LDW = 1152
    RS = 4; XST = 16384; WST = 20480; STAGE = XST + WST
    NDMA = 9
    vXo = [1, 2]; vWo = list(range(3, 8))
    vXa = [[8 + 2 * r + s for s in range(2)] for r in range(RS)]
    vWa = [16 + r for r in range(RS)]
    acc = lambda mb, nb: V(32 + 4 * (nb * 2 + mb), 4)
    fX = lambda buf, mb: V(104 + 44 * buf + 4 * mb, 4)
    fWh = lambda buf, nb, h: V(104 + 44 * buf + 8 + 4 * nb + 2 * h, 2)
    fW = lambda buf, nb: V(104 + 44 * buf + 8 + 4 * nb, 4)
    T = 40
    L = T + 1
    e.many(f"""
    s_cmp_ge_u32 s2, 256
    s_cbranch_scc1 {name}_end
    s_load_dwordx2 s[6:7], s[0:1], {KA['wo'] if mode=='o' else KA['wd']}
    s_load_dwordx2 s[10:11], s[0:1], {KA['ws']}
    v_lshrrev_b32 v{T}, 6, v0
    v_and_b32 v{L}, 63, v0
    v_readfirstlane_b32 s36, v{T}
    s_and_b32 s39, s2, 3
    s_lshr_b32 s38, s2, 2
    s_and_b32 s38, s38, 1
    s_lshl_b32 s38, s38, 3
    s_lshr_b32 s40, s2, 3
    s_and_b32 s40, s40, 7
    s_add_u32 s38, s38, s40
    s_lshr_b32 s37, s2, 6
    """)
    e.many(f"""
    v_lshrrev_b32 v{T+2}, 3, v{L}
    s_movk_i32 s40, {LDX}
    v_mul_lo_u32 v{T+2}, v{T+2}, s40
    s_mul_i32 s40, s36, {32*LDX}
    v_add_u32 v{T+2}, s40, v{T+2}
    v_and_b32 v{T+3}, 7, v{L}
    v_lshrrev_b32 v{T+4}, 4, v{L}
    v_xor_b32 v{T+5}, v{T+3}, v{T+4}
    v_lshl_add_u32 v{vXo[0]}, v{T+5}, 4, v{T+2}
    v_xor_b32 v{T+5}, 4, v{T+5}
    v_lshl_add_u32 v{vXo[1]}, v{T+5}, 4, v{T+2}
    """)
    for j in range(4): e.I(f's_mov_b32 s{24+j}, {8*j*LDX - 1024*j}')
    e.many(f"""
    s_mul_i32 s40, s36, 320
    s_mul_i32 s41, s37, 288
    s_mov_b32 s42, 58255
    s_mov_b32 s43, 6899
    s_movk_i32 s46, 144
    """)
    for jj in range(5):
        e.many(f"""
        v_add_u32 v{T+3}, {64*jj}, v{L}
        v_add_u32 v{T+3}, s40, v{T+3}
        v_mul_lo_u32 v{T+5}, v{T+3}, s43
        v_lshrrev_b32 v{T+5}, 20, v{T+5}
        v_mul_u32_u24 v{T+6}, 152, v{T+5}
        v_sub_u32 v{T+6}, v{T+3}, v{T+6}
        v_min_u32 v{T+6}, 143, v{T+6}
        v_min_u32 v{T+5}, 7, v{T+5}
        v_mul_lo_u32 v{T+7}, v{T+6}, s42
        v_lshrrev_b32 v{T+7}, 20, v{T+7}
        v_mul_u32_u24 v{T+8}, 18, v{T+7}
        v_sub_u32 v{T+8}, v{T+6}, v{T+8}
        v_lshl_add_u32 v{T+7}, v{T+5}, 3, v{T+7}
        v_mul_u32_u24 v{T+7}, {LDW}, v{T+7}
        v_lshl_add_u32 v{T+7}, v{T+8}, 4, v{T+7}
        v_add_u32 v{T+7}, s41, v{T+7}
        v_add_u32 v{vWo[jj]}, {4096-1024*(jj%4)}, v{T+7}
        """)
    e.many(f"""
    v_and_b32 v{T+3}, 15, v{L}
    v_lshrrev_b32 v{T+5}, 4, v{L}
    v_lshrrev_b32 v{T+6}, 1, v{T+3}
    v_lshlrev_b32 v{T+7}, 7, v{T+3}
    s_lshl_b32 s40, s36, 12
    v_add_u32 v{T+7}, s40, v{T+7}
    """)
    for s in range(2):
        e.I(f'v_add_u32 v{T+8}, {4*s}, v{T+5}')
        e.I(f'v_xor_b32 v{T+8}, v{T+8}, v{T+6}')
        e.I(f'v_lshl_add_u32 v{T+8}, v{T+8}, 4, v{T+7}')
        for r in range(RS): e.I(f'v_add_u32 v{vXa[r][s]}, {r*STAGE}, v{T+8}')
    e.many(f"""
    v_lshrrev_b32 v{T+6}, 2, v{T+3}
    v_and_b32 v{T+7}, 3, v{L}
    v_mul_u32_u24 v{T+8}, 2432, v{T+5}
    v_mul_u32_u24 v{T+6}, 288, v{T+6}
    v_add_u32 v{T+8}, v{T+8}, v{T+6}
    v_lshl_add_u32 v{T+8}, v{T+7}, 3, v{T+8}
    """)
    for r in range(RS): e.I(f'v_add_u32 v{vWa[r]}, {r*STAGE+XST}, v{T+8}')
    e.I('s_waitcnt lgkmcnt(0)')
    e.I(f's_mul_i32 s40, s38, {128*LDX}')
    e.I(f's_mul_i32 s41, s39, {KS*2}')
    e.I('s_add_u32 s40, s40, s41')
    e.I(f's_add_u32 s40, s40, {hex(WS_O if mode=="o" else WS_G)}')
    srd(e, 12, 10, 's40', 128 * LDX)
    e.I(f's_sub_u32 s14, s14, s41')
    e.I(f's_mul_i32 s40, s39, {KS*LDW}')
    e.I('s_add_u32 s16, s6, s40'); e.I('s_addc_u32 s17, s7, 0')
    e.I('s_sub_u32 s16, s16, 4096'); e.I('s_subb_u32 s17, s17, 0')
    e.I(f's_mov_b32 s18, {KS*LDW+4096}'); e.I('s_mov_b32 s19, 0x00020000')
    e.I(f's_mul_i32 s40, s39, {SZ_P1}')
    e.I(f's_add_u32 s40, s40, {hex(WS_P)}')
    srd(e, 20, 10, 's40', SZ_P1)
    e.I('s_lshl_b32 s44, s36, 12')
    e.I('s_mul_i32 s45, s36, 5120'); e.I(f's_add_u32 s45, s45, {XST}')
    def dma(c):
        st = (c % RS) * STAGE; o = []
        o.append(f's_add_u32 m0, s44, {st}')
        for j in range(4): o.append(f'buffer_load_dwordx4 v{vXo[j%2]}, s[12:15], s{24+j} offen offset:{1024*j} lds')
        for jj in range(5):
            if jj % 4 == 0: o.append(f's_add_u32 m0, s45, {st + 4096*(jj//4)}')
            o.append(f'buffer_load_dwordx4 v{vWo[jj]}, s[16:19], 0 offen offset:{1024*(jj%4)} lds')
        o.append('s_add_u32 s12, s12, 128'); o.append('s_addc_u32 s13, s13, 0'); o.append('s_sub_u32 s14, s14, 128')
        o.append(f's_add_u32 s16, s16, {64*LDW}'); o.append('s_addc_u32 s17, s17, 0'); o.append(f's_sub_u32 s18, s18, {64*LDW}')
        return o
    for c in range(RS):
        for x in dma(c): e.I(x)
    for r in range(32, 104): e.I(f'v_mov_b32 v{r}, 0')
    def reads(t):
        c, s = divmod(t, 2); r = c % RS; b = t % 2; o = []
        def rx(mb): o.append(f'ds_read_b128 {fX(b,mb)}, v{vXa[r][s]} offset:{2048*mb}')
        def rw(nb):
            for h in range(2): o.append(f'ds_read_b64_tr_b16 {fWh(b,nb,h)}, v{vWa[r]} offset:{9728*s+1152*h+32*nb}')
        rx(0); rw(0); rx(1)
        for nb in range(1, 9): rw(nb)
        return o
    def mfmas(t):
        b = t % 2
        return [f'v_mfma_f32_16x16x32_bf16 {acc(mb,nb)}, {fW(b,nb)}, {fX(b,mb)}, {acc(mb,nb)}' for nb in range(9) for mb in range(2)]
    e.I(f's_waitcnt vmcnt({(RS-1)*NDMA})')
    e.I('s_barrier')
    for x in reads(0): e.I(x)
    NT = NCH * 2
    for t in range(NT):
        c, s = divmod(t, 2)
        mf = mfmas(t)
        if t == NT - 1:
            interleave(e, mf, [])
        elif s == 1:
            e.wait_lgkm(0)
            nout = min(RS - 2, NCH - 2 - c) * NDMA
            e.I(mf[0]); e.I(mf[1])
            e.I(f's_waitcnt vmcnt({nout})'); e.I('s_barrier')
            interleave(e, mf[2:], reads(t + 1))
        else:
            fill = reads(t + 1)
            if c >= 1 and c - 1 + RS < NCH: fill = fill + dma(c - 1 + RS)
            interleave(e, mf, fill)
    e.many(f"""
    v_and_b32 v1, 63, v0
    v_and_b32 v2, 15, v1
    v_lshrrev_b32 v3, 4, v1
    s_lshl_b32 s40, s38, 7
    s_lshl_b32 s41, s36, 5
    s_add_u32 s40, s40, s41
    v_add_u32 v2, s40, v2
    s_movk_i32 s41, 2304
    v_mul_lo_u32 v2, v2, s41
    v_lshl_add_u32 v2, v3, 4, v2
    s_mul_i32 s40, s37, 576
    v_add_u32 v2, s40, v2
    v_add_u32 v3, {16*2304}, v2
    """)
    for nb in range(9):
        for mb in range(2):
            e.I(f'buffer_store_dwordx4 {acc(mb,nb)}, v{2+mb}, s[20:23], 0 offen offset:{64*nb}')
    e.label(f'{name}_end'); e.I('s_endpgm')
    return e.text(), kernel_desc(name, 192, 192, 192, 64), RS * STAGE
```

```python
from asmlib import *

KA = dict(x=0, k=8, v=16, wq=24, wo=32, bx=40, wg=48, wu=56, wd=64, c=72, wmod=80, out=88, dbg=96, ws=104)
WS_MOD = 0
WS_H1 = 0x10000
WS_Q = 0x300000
WS_O = 0x1300000
WS_P = 0x2300000
WS_X1 = 0x3500000
WS_H2 = 0x3800000
WS_G = 0x3B00000
SZ_X = 2048 * 576 * 2
SZ_Q = 2048 * 4096 * 2
SZ_G = 2048 * 4608 * 2
SZ_P1 = 2048 * 576 * 4

def srd(e, d, p, off, nbytes):
    if off == 0:
        e.I(f's_mov_b32 s{d}, s{p}'); e.I(f's_mov_b32 s{d+1}, s{p+1}')
    else:
        e.I(f's_add_u32 s{d}, s{p}, {off if isinstance(off,str) else hex(off)}'); e.I(f's_addc_u32 s{d+1}, s{p+1}, 0')
    e.I(f's_mov_b32 s{d+2}, {hex(nbytes)}'); e.I(f's_mov_b32 s{d+3}, 0x00020000')

def rnd2(e, a, b, tmp):
    e.I(f'v_cvt_pk_bf16_f32 v{tmp}, v{a}, v{b}')
    e.I(f'v_lshlrev_b32 v{a}, 16, v{tmp}')
    e.I(f'v_and_b32 v{b}, 0xffff0000, v{tmp}')
def rnd1(e, a):
    e.I(f'v_cvt_pk_bf16_f32 v{a}, v{a}, v{a}')
    e.I(f'v_lshlrev_b32 v{a}, 16, v{a}')

def gen_mod(name):
    e = Emitter()
    e.raw(kernel_head(name))
    e.many(f"""
    s_cmp_ge_u32 s2, 108
    s_cbranch_scc1 {name}_end
    s_load_dwordx2 s[4:5], s[0:1], {KA['c']}
    s_load_dwordx2 s[6:7], s[0:1], {KA['wmod']}
    s_load_dwordx2 s[8:9], s[0:1], {KA['ws']}
    v_and_b32 v1, 3, v0
    v_lshrrev_b32 v2, 2, v0
    v_lshlrev_b32 v3, 1, v2
    s_mov_b32 s24, 6912
    v_mul_lo_u32 v4, v2, s24
    v_lshlrev_b32 v5, 4, v1
    v_add_u32 v4, v4, v5
    s_lshl_b32 s25, s2, 6
    v_add_u32 v4, s25, v4
    s_waitcnt lgkmcnt(0)
    """)
    srd(e, 12, 4, 0, 1152); srd(e, 16, 6, 0, 576 * 6912); srd(e, 20, 8, WS_MOD, 13824)
    for i in range(9):
        e.I(f's_mov_b32 s{26+i}, {i*64*6912}')
    for i in range(9):
        e.I(f'buffer_load_dwordx4 {V(24+4*i,4)}, v4, s[16:19], s{26+i} offen')
    for i in range(9):
        e.I(f'buffer_load_ushort v{10+i}, v3, s[12:15], 0 offen offset:{128*i}')
    for j in range(8): e.I(f'v_mov_b32 v{64+j}, 0')
    e.I('s_waitcnt vmcnt(0)')
    e.I('s_mov_b32 s36, 0xbfb8aa3b')
    for i in range(9):
        c = 10 + i
        e.I(f'v_lshlrev_b32 v{c}, 16, v{c}')
        e.I(f'v_mul_f32 v20, s36, v{c}')
        e.I('v_exp_f32 v20, v20')
        e.I('v_add_f32 v20, 1.0, v20')
        e.I('v_rcp_f32 v20, v20')
        e.I(f'v_mul_f32 v{c}, v{c}, v20')
        rnd1(e, c)
    for i in range(9):
        for d in range(4):
            w = 24 + 4 * i + d
            e.I(f'v_lshlrev_b32 v21, 16, v{w}')
            e.I(f'v_and_b32 v22, 0xffff0000, v{w}')
            e.I(f'v_fmac_f32 v{64+2*d}, v{10+i}, v21')
            e.I(f'v_fmac_f32 v{65+2*d}, v{10+i}, v22')
    e.many("""
    v_lshlrev_b32 v5, 7, v2
    v_lshlrev_b32 v6, 5, v1
    v_add_u32 v5, v5, v6
    ds_write_b128 v5, v[64:67]
    ds_write_b128 v5, v[68:71] offset:16
    s_waitcnt lgkmcnt(0)
    s_barrier
    v_and_b32 v6, 31, v0
    v_lshrrev_b32 v7, 5, v0
    v_lshlrev_b32 v8, 10, v7
    v_lshlrev_b32 v9, 2, v6
    v_add_u32 v8, v8, v9
    """)
    e.lgkm_clear()
    for i in range(8): e.I(f'ds_read_b32 v{24+i}, v8 offset:{128*i}')
    for i in range(1, 8): e.I(f'v_add_f32 v24, v24, v{24+i}')
    e.many("""
    v_lshlrev_b32 v8, 7, v7
    v_add_u32 v8, v8, v9
    ds_write_b32 v8, v24 offset:8192
    s_waitcnt lgkmcnt(0)
    s_barrier
    """)
    e.lgkm_clear()
    for i in range(8): e.I(f'ds_read_b32 v{24+i}, v9 offset:{8192+128*i}')
    for i in range(1, 8): e.I(f'v_add_f32 v24, v24, v{24+i}')
    rnd1(e, 24)
    e.many(f"""
    s_mul_i32 s37, s2, 3641
    s_lshr_b32 s37, s37, 16
    s_cmp_eq_u32 s37, 1
    s_cselect_b32 s38, 1, 0
    s_cmp_eq_u32 s37, 4
    s_cselect_b32 s38, 1, s38
    s_cmp_eq_u32 s38, 0
    s_cbranch_scc1 {name}_noadd
    v_add_f32 v24, 1.0, v24
    """)
    rnd1(e, 24)
    e.label(f'{name}_noadd')
    e.many(f"""
    s_lshl_b32 s25, s2, 7
    v_add_u32 v9, s25, v9
    v_cmp_gt_u32 vcc, 32, v0
    s_and_saveexec_b64 s[40:41], vcc
    s_cbranch_execz {name}_end
    buffer_store_dword v24, v9, s[20:23], 0 offen
    {name}_end:
    s_endpgm
    """)
    return e.text(), kernel_desc(name, 80, 80, 80, 48)

def reduce32(e, r, t):
    e.I(f'v_add_f32_dpp v{r}, v{r}, v{r} quad_perm:[1,0,3,2] row_mask:0xf bank_mask:0xf')
    e.I(f'v_add_f32_dpp v{r}, v{r}, v{r} quad_perm:[2,3,0,1] row_mask:0xf bank_mask:0xf')
    e.I(f'v_add_f32_dpp v{r}, v{r}, v{r} row_half_mirror row_mask:0xf bank_mask:0xf')
    e.I(f'v_add_f32_dpp v{r}, v{r}, v{r} row_mirror row_mask:0xf bank_mask:0xf')
    e.I(f'ds_swizzle_b32 v{t}, v{r} offset:0x401F')
    e.I(f'v_add_f32 v{r}, v{r}, v{t}')

def gen_ln(name, kind):
    e = Emitter()
    e.raw(kernel_head(name))
    e.many(f"""
    s_cmp_ge_u32 s2, 256
    s_cbranch_scc1 {name}_end
    s_load_dwordx2 s[4:5], s[0:1], {KA['x']}
    s_load_dwordx2 s[6:7], s[0:1], {KA['out']}
    s_load_dwordx2 s[8:9], s[0:1], {KA['ws']}
    v_and_b32 v1, 31, v0
    v_lshrrev_b32 v2, 5, v0
    s_lshl_b32 s3, s2, 3
    v_add_u32 v2, s3, v2
    s_movk_i32 s10, 1152
    v_mul_lo_u32 v3, v2, s10
    v_lshlrev_b32 v4, 2, v1
    v_add_u32 v3, v3, v4
    v_lshlrev_b32 v5, 1, v3
    v_lshlrev_b32 v6, 3, v1
    s_waitcnt lgkmcnt(0)
    """)
    srd(e, 12, 8, WS_MOD, 13824)
    if kind == 'red_out': srd(e, 16, 8, WS_X1, SZ_X)
    else: srd(e, 16, 4, 0, SZ_X)
    XR = 8
    PR = 20
    M0, M1, M2 = 96, 116, 136
    XF = 160
    for i in range(9): e.I(f'buffer_load_dword v{XR+i}, v3, s[16:19], 0 offen offset:{128*i}')
    if kind != 'ln1':
        srd(e, 20, 8, WS_P, 4 * SZ_P1)
        for s in range(4):
            e.I(f's_mov_b32 s{28+s}, {s*SZ_P1}')
            for i in range(9):
                e.I(f'buffer_load_dwordx2 {V(PR+18*s+2*i,2)}, v5, s[20:23], s{28+s} offen offset:{256*i}')
    segs = {'ln1': [(M1, 1), (M2, 0)], 'red_ln2': [(M0, 2), (M1, 4), (M2, 3)], 'red_out': [(M0, 5)]}[kind]
    for (mr, seg) in segs:
        e.I(f's_mov_b32 s32, {seg*2304}')
        for i in range(9):
            e.I(f'buffer_load_dwordx2 {V(mr+2*i,2)}, v6, s[12:15], s32 offen offset:{256*i}')
    e.I('s_waitcnt vmcnt(0)')
    for i in range(9):
        e.I(f'v_lshlrev_b32 v{XF+2*i}, 16, v{XR+i}')
        e.I(f'v_and_b32 v{XF+2*i+1}, 0xffff0000, v{XR+i}')
    if kind != 'ln1':
        for j in range(18):
            e.I(f'v_add_f32 v{PR+j}, v{PR+j}, v{PR+18+j}')
            e.I(f'v_add_f32 v{PR+36+j}, v{PR+36+j}, v{PR+54+j}')
            e.I(f'v_add_f32 v{PR+j}, v{PR+j}, v{PR+36+j}')
        for i in range(9):
            a, b = PR + 2 * i, PR + 2 * i + 1
            rnd2(e, a, b, 7)
            e.I(f'v_mul_f32 v{a}, v{a}, v{M0+2*i}'); e.I(f'v_mul_f32 v{b}, v{b}, v{M0+2*i+1}')
            rnd2(e, a, b, 7)
            e.I(f'v_add_f32 v{a}, v{a}, v{XF+2*i}'); e.I(f'v_add_f32 v{b}, v{b}, v{XF+2*i+1}')
            e.I(f'v_cvt_pk_bf16_f32 v{XR+i}, v{a}, v{b}')
        if kind == 'red_out':
            srd(e, 24, 6, 0, SZ_X)
        else:
            srd(e, 24, 8, WS_X1, SZ_X)
        for i in range(9): e.I(f'buffer_store_dword v{XR+i}, v3, s[24:27], 0 offen offset:{128*i}')
        if kind == 'red_out':
            e.label(f'{name}_end'); e.I('s_endpgm')
            return e.text(), kernel_desc(name, 184, 184, 184, 48)
        for i in range(9):
            e.I(f'v_lshlrev_b32 v{XF+2*i}, 16, v{XR+i}')
            e.I(f'v_and_b32 v{XF+2*i+1}, 0xffff0000, v{XR+i}')
    T = 180
    e.I(f'v_add_f32 v{T}, v{XF}, v{XF+1}')
    for j in range(2, 18): e.I(f'v_add_f32 v{T}, v{T}, v{XF+j}')
    reduce32(e, T, T + 1)
    e.I('s_mov_b32 s33, 0x3ae38e39')
    e.I(f'v_mul_f32 v{T}, s33, v{T}')
    e.I(f'v_mov_b32 v{T+2}, 0')
    for j in range(18):
        e.I(f'v_sub_f32 v{T+3}, v{XF+j}, v{T}')
        e.I(f'v_fmac_f32 v{T+2}, v{T+3}, v{T+3}')
    reduce32(e, T + 2, T + 1)
    e.I(f'v_mul_f32 v{T+2}, s33, v{T+2}')
    rnd1(e, T + 2)
    e.I(f'v_add_f32 v{T+2}, 0x3727c5ac, v{T+2}')
    rnd1(e, T + 2)
    e.I(f'v_sqrt_f32 v{T+2}, v{T+2}')
    rnd1(e, T + 2)
    e.I(f'v_rcp_f32 v{T+2}, v{T+2}')
    rnd1(e, T)
    for i in range(9):
        a, b = XF + 2 * i, XF + 2 * i + 1
        e.I(f'v_sub_f32 v{a}, v{a}, v{T}'); e.I(f'v_sub_f32 v{b}, v{b}, v{T}')
        rnd2(e, a, b, 7)
        e.I(f'v_mul_f32 v{a}, v{a}, v{T+2}'); e.I(f'v_mul_f32 v{b}, v{b}, v{T+2}')
        rnd2(e, a, b, 7)
        e.I(f'v_mul_f32 v{a}, v{a}, v{M1+2*i}'); e.I(f'v_mul_f32 v{b}, v{b}, v{M1+2*i+1}')
        rnd2(e, a, b, 7)
        e.I(f'v_add_f32 v{a}, v{a}, v{M2+2*i}'); e.I(f'v_add_f32 v{b}, v{b}, v{M2+2*i+1}')
        e.I(f'v_cvt_pk_bf16_f32 v{PR+i}, v{a}, v{b}')
    srd(e, 36, 8, WS_H1 if kind == 'ln1' else WS_H2, SZ_X)
    for i in range(9): e.I(f'buffer_store_dword v{PR+i}, v3, s[36:39], 0 offen offset:{128*i}')
    e.label(f'{name}_end'); e.I('s_endpgm')
    return e.text(), kernel_desc(name, 184, 184, 184, 48)
```

```python
import sys
from small import *
import gemm, attn
def build(path):
    ks = []
    t, d = gen_mod('mod_kernel'); ks.append(('mod_kernel', 108, 256, 16384, t, d))
    t, d = gen_ln('ln1_kernel', 'ln1'); ks.append(('ln1_kernel', 256, 256, 0, t, d))
    t, d, l = gemm.gemm32('qproj_kernel', 'q'); ks.append(('qproj_kernel', 256, 256, l, t, d))
    t, d, l = attn.gen_attn('attn_kernel'); ks.append(('attn_kernel', 256, 256, l, t, d))
    t, d, l = gemm.gemm16('oproj_kernel', 'o'); ks.append(('oproj_kernel', 256, 256, l, t, d))
    t, d = gen_ln('redln2_kernel', 'red_ln2'); ks.append(('redln2_kernel', 256, 256, 0, t, d))
    t, d, l = gemm.gemm32('glu_kernel', 'glu'); ks.append(('glu_kernel', 256, 256, l, t, d))
    t, d, l = gemm.gemm16('down_kernel', 'd'); ks.append(('down_kernel', 256, 256, l, t, d))
    t, d = gen_ln('redout_kernel', 'red_out'); ks.append(('redout_kernel', 256, 256, 0, t, d))
    s = "; adaLN-conditioned block: cached-KV MHA + ReGLU FFN. Generated by gen/build.py (hand-written generator).\n"
    for k in ks: s += f"; @launch kernel={k[0]} grid=({k[1]},1,1) block=({k[2]},1,1) lds={k[3]}\n"
    s += '.amdgcn_target "amdgcn-amd-amdhsa--gfx950"\n.text\n'
    for k in ks: s += k[4]
    s += '.section .rodata,"a"\n'
    for k in ks: s += k[5]
    open(path, 'w').write(s)
if __name__ == '__main__':
    build(sys.argv[1] if len(sys.argv) > 1 else 'adaLN_cond__mha_block_cached__glu_gated_reglu__prompt.s')
```
